```python
import torch

def _softmax(x, axis=-1):
    return torch.softmax(x, dim=axis)

def _gelu(x):
    return torch.nn.functional.gelu(x, approximate='tanh')

def _silu(x):
    return torch.nn.functional.silu(x)

def _sigmoid(x):
    return torch.sigmoid(x)

def _layernorm(x, axis=-1, eps=1e-05):
    m = x.mean(dim=axis, keepdim=True)
    v = x.var(dim=axis, keepdim=True, unbiased=False)
    return (x - m) / torch.sqrt(v + eps)

def _scatter_add(tgt, idx, src, axis=0):
    return tgt.clone().index_add_(axis, idx, src)

def _segment_sum(src, seg, n):
    out = torch.zeros((n,) + src.shape[1:], dtype=src.dtype)
    return out.index_add_(0, seg, src)

def _pad(x, pw):
    flat = tuple((v for pair in reversed(pw) for v in pair))
    return torch.nn.functional.pad(x, flat)
kernel_name = 'sequential_preLN__sliding_block__mixer_gmlp__prompt'

def setup_inputs():

    _w = lambda a: (lambda t: t.to(torch.bfloat16) if t.is_floating_point() else t)(torch.as_tensor(a))

    def _A_setup():
        B, S, D = (1, 2048, 1024)
        return {'x': _w((lambda *s: torch.randn(*s, dtype=torch.bfloat16) * 0.05)(B, S, D)), 'wqkv': _w((lambda *s: torch.randn(*s, dtype=torch.bfloat16) * 0.05)(D, 3 * D)), 'wo': _w((lambda *s: torch.randn(*s, dtype=torch.bfloat16) * 0.05)(D, D))}
    _A_in = _A_setup()

    def _B_setup():
        B, S, D, F = (1, 2048, 1024, 3584)
        Fh = F // 2
        return {'x': _w((lambda *s: torch.randn(*s, dtype=torch.bfloat16) * 0.05)(B, S, D)), 'w_in': _w((lambda *s: torch.randn(*s, dtype=torch.bfloat16) * 0.8)(D, 2 * Fh)), 'w_sp': _w(0.01 * (lambda *s: torch.randn(*s, dtype=torch.bfloat16) * 0.8)(S, S)), 'b_sp': _w(1.0 + 0.01 * (lambda *s: torch.randn(*s, dtype=torch.bfloat16) * 0.05)(S)), 'w_out': _w((lambda *s: torch.randn(*s, dtype=torch.bfloat16) * 0.05)(Fh, D))}
    _B_in = _B_setup()
    return {'A_x': _A_in['x'], 'A_wqkv': _A_in['wqkv'], 'A_wo': _A_in['wo'], 'B_x': _B_in['x'], 'B_w_in': _B_in['w_in'], 'B_w_sp': _B_in['w_sp'], 'B_b_sp': _B_in['b_sp'], 'B_w_out': _B_in['w_out']}

def reference(A_x, A_wqkv, A_wo, B_x, B_w_in, B_w_sp, B_b_sp, B_w_out):

    def _A_ref(x, wqkv, wo):
        B, S, D = x.shape
        H = 32
        Dh = D // H
        W = 256
        qkv = (lambda x, *d: x.permute(*d))((x @ wqkv).reshape(B, S, 3, H, Dh), 2, 0, 3, 1, 4)
        q, k, v = (qkv[0], qkv[1], qkv[2])
        scores = torch.einsum('bhqd,bhkd->bhqk', q, k) * Dh ** (-0.5)
        idx = torch.arange(S)
        mask = (idx[:, None] - idx[None, :] >= 0) & (idx[:, None] - idx[None, :] < W)
        scores = torch.where(mask[None, None], scores, -1000000000.0)
        p = _softmax(scores, axis=-1)
        o = torch.einsum('bhqk,bhkd->bhqd', p, v)
        return (lambda x, *d: x.permute(*d))(o, 0, 2, 1, 3).reshape(B, S, D) @ wo

    def _B_ref(x, w_in, w_sp, b_sp, w_out):
        B, S, D = x.shape
        F = w_in.shape[-1]
        Fh = F // 2
        z = _gelu(torch.einsum('bsd,df->bsf', x, w_in))
        z1 = z[..., :Fh].clone()
        z2 = _layernorm(z[..., Fh:], axis=-1)
        g = torch.einsum('ts,bsf->btf', w_sp, z2) + b_sp[None, :, None]
        return torch.einsum('bsf,fd->bsd', z1 * g, w_out)
    x = A_x
    h = x + _A_ref(_layernorm(x, axis=-1), A_wqkv, A_wo)
    h2 = h + _B_ref(_layernorm(h, axis=-1), B_w_in, B_w_sp, B_b_sp, B_w_out)
    return h2
```

```python
import struct
MB = 1 << 20
WS = dict(XN=0, QKV=4*MB, O=16*MB, H=20*MB, Z1=24*MB, Z2=32*MB, U=40*MB, CS=48*MB, ST2=49*MB, ST3=50*MB)
PTR = dict(x=0, wqkv=8, wo=16, w_in=32, w_sp=40, b_sp=48, w_out=56, out=64, dbg=72, ws=80)
def fbits(f): return '0x%08x' % struct.unpack('<I', struct.pack('<f', f))[0]
def vr(b, n=1): return 'v%d' % b if n == 1 else 'v[%d:%d]' % (b, b+n-1)
def sr(b, n=1): return 's%d' % b if n == 1 else 's[%d:%d]' % (b, b+n-1)
class Asm:
    def __init__(s): s.l = []; s.nv = 1; s.kern = []
    def __call__(s, t):
        for x in t.strip().split('\n'): s.l.append(x.strip())
    def alloc(s, n=1, al=None):
        al = al or (4 if n >= 4 else (2 if n >= 2 else 1))
        s.nv = (s.nv + al - 1) // al * al; b = s.nv; s.nv += n
        assert s.nv <= 256, 'vgpr overflow'
        return b
    def begin(s, name, grid, block, lds):
        s.nv = 1; s.cur = (name, grid, block, lds)
        s(f'.globl {name}\n.p2align 8\n.type {name},@function\n{name}:')
        s(f's_cmp_ge_u32 s2, {grid}\ns_cbranch_scc1 L{name}_end')
        s('s_load_dwordx16 s[40:55], s[0:1], 0\ns_load_dwordx4 s[56:59], s[0:1], 64\ns_load_dwordx2 s[60:61], s[0:1], 80')
    def end(s, nv=None):
        name = s.cur[0]
        s(f'L{name}_end:\ns_endpgm')
        s.kern.append(s.cur + (nv or s.nv,))
    def srd(s, d, ptr, off, size):
        p = 40 + PTR[ptr] // 4
        if off: s(f's_add_u32 s{d}, s{p}, {off}\ns_addc_u32 s{d+1}, s{p+1}, 0')
        else: s(f's_mov_b32 s{d}, s{p}\ns_mov_b32 s{d+1}, s{p+1}')
        s(f's_mov_b32 s{d+2}, {size}\ns_mov_b32 s{d+3}, 0x00020000')
    def xsum(s, regs, tmp, lo16=False):
        if lo16:
            for m in ['quad_perm:[1,0,3,2]', 'quad_perm:[2,3,0,1]', 'row_half_mirror', 'row_mirror']:
                s('s_nop 1')
                for r in regs: s(f'v_add_f32_dpp v{r}, v{r}, v{r} {m} row_mask:0xf bank_mask:0xf')
        for p in ['16', '32']:
            for r, t in zip(regs, tmp): s(f'v_mov_b32 v{t}, v{r}')
            s('s_nop 1')
            for r, t in zip(regs, tmp): s(f'v_permlane{p}_swap_b32 v{r}, v{t}')
            s('s_nop 1')
            for r, t in zip(regs, tmp): s(f'v_add_f32 v{r}, v{r}, v{t}')

def weave(a, mf, fill, start=0, per=1):
    fill = list(fill); n = len(mf)
    for i, m in enumerate(mf):
        a(m)
        if i >= start and fill:
            left = n - i
            k = max(per, -(-len(fill) // left)) if left > 0 else len(fill)
            for _ in range(min(k, len(fill))): a(fill.pop(0))
    for f in fill: a(f)

class G: pass
def gemm(a, name, A, B, K, BN, wm, wn, NS, xmap, pre, epi):
    g = G(); g.a = a; g.name = name
    MT = 128 // wm // 16; NT = BN // wn // 16; KT = K // 64
    CPR = BN // 8; NB = -(-CPR // 4); P = BN * 2
    STAGE = 16384 + NB * 4096; ND = 4 + NB
    g.MT, g.NT, g.wm, g.wn = MT, NT, wm, wn
    a.begin(name, 256, 256, NS * STAGE)
    lda, ldb = A[3], B[3]
    ncls = {192: 4, 64: 4, 224: 2, 112: 1}[BN]; ncls = min(ncls, NT)
    vA = a.alloc(4); vB = a.alloc(NB); rA = a.alloc(2); rB = a.alloc(ncls); cA = a.alloc(2); cB = a.alloc(ncls)
    t = a.alloc(8); g.t = t; g.lane = lane = a.alloc(); g.j = vj = a.alloc(); g.g = vg = a.alloc()
    acc = a.alloc(MT * NT * 4); g.acc = lambda mt, nt: acc + (mt * NT + nt) * 4
    F = [a.alloc((MT + NT) * 4) for _ in range(2)]; g.F = F; g.nF = (MT + NT) * 8
    a(f'v_lshrrev_b32 v{t}, 6, v0\nv_and_b32 v{lane}, 63, v0\ns_and_b32 s3, s2, 7\nv_readfirstlane_b32 s30, v{t}\ns_lshr_b32 s4, s2, 3')
    if xmap == '8x4':
        a('s_and_b32 s28, s3, 1\ns_lshl_b32 s28, s28, 3\ns_and_b32 s5, s4, 7\ns_add_u32 s28, s28, s5')
        a('s_lshr_b32 s29, s3, 1\ns_lshl_b32 s29, s29, 2\ns_lshr_b32 s5, s4, 3\ns_add_u32 s29, s29, s5')
    else:
        a('s_and_b32 s28, s3, 3\ns_lshl_b32 s28, s28, 2\ns_and_b32 s5, s4, 3\ns_add_u32 s28, s28, s5')
        a('s_lshr_b32 s29, s3, 2\ns_lshl_b32 s29, s29, 3\ns_lshr_b32 s5, s4, 2\ns_add_u32 s29, s29, s5')
    if wn == 2: a('s_lshr_b32 s62, s30, 1\ns_and_b32 s63, s30, 1')
    else: a('s_mov_b32 s62, s30\ns_mov_b32 s63, 0')
    a(f'v_and_b32 v{vj}, 15, v{lane}\nv_lshrrev_b32 v{vg}, 4, v{lane}')
    a(f's_lshl_b32 s5, s30, 5\nv_lshrrev_b32 v{t}, 3, v{lane}\nv_add_u32 v{t}, s5, v{t}\ns_mov_b32 s6, {lda}\nv_mul_lo_u32 v{t}, v{t}, s6')
    a(f'v_and_b32 v{t+1}, 7, v{lane}\nv_xor_b32 v{t+1}, v{t+1}, v{vg}\nv_lshlrev_b32 v{t+1}, 4, v{t+1}')
    for i in range(4):
        a(f'v_xor_b32 v{t+2}, {64*(i&1)}, v{t+1}\nv_add_u32 v{t+2}, v{t}, v{t+2}\nv_add_u32 v{vA+i}, {8*i*lda}, v{t+2}')
    magic = -(-(1 << 20) // CPR)
    assert all((c * magic) >> 20 == c // CPR for c in range(NB * 256))
    def fx(dst, rho):
        if BN in (192, 64): a(f'v_bfe_u32 v{dst}, v{rho}, 1, 2')
        elif BN == 224: a(f'v_bfe_u32 v{dst}, v{rho}, 2, 1')
        else: a(f'v_mov_b32 v{dst}, 0')
    a(f's_mul_i32 s5, s30, {NB*64}\ns_mov_b32 s6, {ldb}')
    for i in range(NB):
        a(f'''v_add_u32 v{t}, s5, v{lane}
        v_add_u32 v{t}, {64*i}, v{t}
        v_mul_u32_u24 v{t+1}, {magic}, v{t}
        v_lshrrev_b32 v{t+1}, 20, v{t+1}
        v_mul_u32_u24 v{t+2}, {CPR}, v{t+1}
        v_sub_u32 v{t+2}, v{t}, v{t+2}''')
        fx(t+3, t+1)
        a(f'''v_lshlrev_b32 v{t+3}, 1, v{t+3}
        v_xor_b32 v{t+2}, v{t+2}, v{t+3}
        v_and_b32 v{t+3}, 0x33, v{t+1}
        v_bfe_u32 v{t+4}, v{t+1}, 2, 1
        v_lshl_or_b32 v{t+3}, v{t+4}, 3, v{t+3}
        v_bfe_u32 v{t+4}, v{t+1}, 3, 1
        v_lshl_or_b32 v{t+3}, v{t+4}, 2, v{t+3}
        v_mul_lo_u32 v{t+3}, v{t+3}, s6
        v_lshl_add_u32 v{vB+i}, v{t+2}, 4, v{t+3}''')
        if CPR % 4:
            a(f'v_cmp_lt_u32 vcc, 63, v{t+1}\nv_bfrev_b32 v{t+4}, 1\ns_nop 0\nv_cndmask_b32 v{vB+i}, v{vB+i}, v{t+4}, vcc')
    a(f'''s_mul_i32 s5, s62, {16*MT*128}
    v_bfe_u32 v{t}, v{vj}, 1, 3
    v_xor_b32 v{t}, v{t}, v{vg}
    v_lshlrev_b32 v{t}, 4, v{t}
    v_lshl_add_u32 v{t}, v{vj}, 7, v{t}
    v_add_u32 v{rA}, s5, v{t}
    v_xor_b32 v{rA+1}, 64, v{rA}
    v_bfe_u32 v{t}, v{lane}, 2, 3
    v_bfe_u32 v{t+1}, v{lane}, 5, 1
    v_lshl_add_u32 v{t+1}, v{t+1}, 4, v{t}
    v_mul_u32_u24 v{t+1}, {P}, v{t+1}
    v_and_b32 v{t+2}, 3, v{lane}
    v_lshl_add_u32 v{t+1}, v{t+2}, 3, v{t+1}
    v_add_u32 v{t+1}, 16384, v{t+1}
    s_mul_i32 s5, s63, {NT}''')
    fx(t+2, t)
    for c in range(ncls):
        a(f's_add_u32 s6, s5, {c}\nv_xor_b32 v{t+3}, s6, v{t+2}\nv_lshl_add_u32 v{rB+c}, v{t+3}, 5, v{t+1}')
    a('s_waitcnt lgkmcnt(0)')
    a.srd(8, A[0], A[1], A[2]); a.srd(12, B[0], B[1], B[2])
    a(f's_mul_i32 s31, s28, {128*lda}\ns_mul_i32 s32, s29, {B[4]}\ns_lshl_b32 s36, s30, 12\ns_mul_i32 s37, s30, {NB*1024}\ns_add_u32 s37, s37, 16384')
    pre(g)
    def dmaA(base): return [f's_add_u32 m0, {base}, {i*1024}\ns_nop 0\nbuffer_load_dwordx4 v{vA+i}, s[8:11], s31 offen lds' for i in range(4)]
    def dmaB(base): return [f's_add_u32 m0, {base}, {i*1024}\ns_nop 0\nbuffer_load_dwordx4 v{vB+i}, s[12:15], s32 offen lds' for i in range(NB)]
    for st in range(NS):
        a(f's_add_u32 s38, s36, {st*STAGE}')
        for d in dmaA('s38'): a(d)
        a('s_add_u32 s31, s31, 128')
        if st < NS - 1:
            a(f's_add_u32 s39, s37, {st*STAGE}')
            for d in dmaB('s39'): a(d)
            a(f's_add_u32 s32, s32, {64*ldb}')
    for r in range(MT * NT * 4): a(f'v_mov_b32 v{acc+r}, 0')
    def reads(f, s):
        ra = [f'ds_read_b128 {vr(F[f]+4*mt,4)}, v{cA+s} offset:{2048*mt}' for mt in range(MT)]
        rb = [[f'ds_read_b64_tr_b16 {vr(F[f]+4*(MT+nt)+2*h,2)}, v{cB+nt%ncls} offset:{(nt-nt%ncls)*32+(32*s+8*h)*P}' for h in range(2)] for nt in range(NT)]
        return rb[0] + ra + sum(rb[1:], [])
    def mfmas(f): return [f'v_mfma_f32_16x16x32_bf16 {vr(g.acc(mt,nt),4)}, {vr(F[f]+4*(MT+nt),4)}, {vr(F[f]+4*mt,4)}, {vr(g.acc(mt,nt),4)}' for nt in range(NT) for mt in range(MT)]
    upd = [f'v_add_u32 v{cB+c}, s34, v{rB+c}' for c in range(ncls)] + [f'v_add_u32 v{cA+s}, s34, v{rA+s}' for s in range(2)]
    a(f's_mov_b32 s33, 0\ns_mov_b32 s34, 0\ns_add_u32 s39, s37, {(NS-1)*STAGE}')
    for u in upd: a(u)
    a(f's_waitcnt vmcnt({(NS-2)*ND+4})\ns_barrier')
    for r in reads(0, 0): a(r)
    if hasattr(g, 'mid'): g.mid()
    a(f'L{name}_loop:')
    a(f's_cmp_lt_u32 s33, {KT-NS+1}\ns_cselect_b32 s14, {B[2]}, 0\ns_waitcnt lgkmcnt(0)')
    weave(a, mfmas(0), reads(1, 1) + dmaB('s39') + [f's_add_u32 s32, s32, {64*ldb}'])
    a(f's_add_u32 s38, s34, s36\ns_add_u32 s39, s34, s37\ns_add_u32 s34, s34, {STAGE}\ns_cmp_eq_u32 s34, {NS*STAGE}\ns_cselect_b32 s34, 0, s34')
    a(f's_cmp_lt_u32 s33, {KT-NS}\ns_cselect_b32 s10, {A[2]}, 0\ns_waitcnt lgkmcnt(0)')
    m = mfmas(1); h = 2
    weave(a, m[:h], upd)
    a(f's_waitcnt vmcnt({(NS-2)*ND})\ns_barrier')
    weave(a, m[h:], reads(0, 0) + dmaA('s38') + ['s_add_u32 s31, s31, 128'])
    a(f's_add_u32 s33, s33, 1\ns_cmp_lt_u32 s33, {KT}\ns_cbranch_scc1 L{name}_loop')
    a('s_waitcnt lgkmcnt(0)\ns_nop 7')
    epi(g)
    a.end()

def swap_tiles(g, mt):
    a = g.a; segs = []
    for p in range(g.NT // 2):
        x, y = g.acc(mt, 2*p), g.acc(mt, 2*p+1)
        for e in range(4): a(f'v_permlane16_swap_b32 v{x+e}, v{y+e}')
        segs.append((32*p, x, 8))
    if g.NT % 2: segs.append((16*(g.NT-1), g.acc(mt, g.NT-1), 4))
    a('s_nop 1')
    return segs
def segs_of(g):
    return [(32*p, 8) for p in range(g.NT // 2)] + ([(16*(g.NT-1), 4)] if g.NT % 2 else [])
def lane_offs(g, RS, esz, rows=True):
    a = g.a; t = g.t; w = a.alloc(); n = a.alloc()
    a(f'v_and_b32 v{t}, 1, v{g.g}\nv_lshrrev_b32 v{t+1}, 1, v{g.g}\nv_lshl_add_u32 v{t}, v{t}, 1, v{t+1}')
    a(f'v_mul_u32_u24 v{w}, {8*esz}, v{t}\nv_mul_u32_u24 v{n}, {4*esz}, v{g.g}')
    if rows: a(f'v_mul_u32_u24 v{t}, {RS}, v{g.j}\nv_add_u32 v{w}, v{w}, v{t}\nv_add_u32 v{n}, v{n}, v{t}')
    return w, n
```

```python
from core import *
import math
def ld(n): return {8: 'dwordx4', 4: 'dwordx2'}[n]
def unpack(a, dst, src, n):
    for i in range(n // 2): a(f'v_lshlrev_b32 v{dst+2*i}, 16, v{src+i}\nv_and_b32 v{dst+2*i+1}, 0xffff0000, v{src+i}')
def cvt_store(g, x, n, off, srd, soff, imm, flags=''):
    a = g.a
    for i in range(n // 2): a(f'v_cvt_pk_bf16_f32 v{x+i}, v{x+2*i}, v{x+2*i+1}')
    a(f'buffer_store_{ld(n)} {vr(x,n//2)}, v{off[0 if n==8 else 1]}, {sr(srd,4)}, {soff} offen offset:{imm} {flags}')
def k1_pre(g):
    a = g.a; a.srd(16, 'ws', WS['QKV'], 12*MB); g.o = lane_offs(g, 64, 2)
def k1_epi(g):
    a = g.a
    a('s_mul_i32 s3, s29, 6\ns_mul_i32 s4, s63, 3\ns_add_u32 s3, s3, s4\ns_lshl_b32 s3, s3, 17\ns_lshl_b32 s4, s28, 13\ns_add_u32 s3, s3, s4\ns_lshl_b32 s4, s62, 12\ns_add_u32 s64, s3, s4')
    a('s_add_u32 s65, s64, 0x20000\ns_add_u32 s66, s64, 0x40000')
    for mt in range(g.MT):
        for p, (c, x, n) in enumerate(swap_tiles(g, mt)): cvt_store(g, x, n, g.o, 16, f's{64+p}', mt*1024)
def res_pre(res, out):
    def f(g):
        a = g.a; a.srd(16, *out); a.srd(20, *res); g.o = lane_offs(g, 2048, 2); g.r = a.alloc(16)
        a('s_lshl_b32 s3, s28, 18\ns_lshl_b32 s4, s30, 16\ns_add_u32 s3, s3, s4\ns_lshl_b32 s4, s29, 7\ns_add_u32 s64, s3, s4\ns_add_u32 s65, s64, 0x8000')
        for mt in range(2):
            for p in range(2): a(f'buffer_load_dwordx4 {vr(g.r+8*mt+4*p,4)}, v{g.o[0]}, s[20:23], s{64+mt} offen offset:{64*p}')
    return f
def res_epi(stats):
    def f(g):
        a = g.a; T = g.F[0]; S = g.F[1]
        if stats:
            a.srd(24, 'ws', WS['ST2'], 2048*128)
            a(f's_lshl_b32 s3, s28, 14\ns_lshl_b32 s4, s30, 12\ns_add_u32 s3, s3, s4\ns_lshl_b32 s4, s29, 3\ns_add_u32 s66, s3, s4\nv_lshlrev_b32 v{S+12}, 7, v{g.j}')
        for mt in range(2):
            for p, (c, x, n) in enumerate(swap_tiles(g, mt)):
                unpack(a, T, g.r+8*mt+4*p, 8)
                for i in range(0, 8, 2):
                    a(f'v_pk_add_f32 {vr(x+i,2)}, {vr(x+i,2)}, {vr(T+i,2)}')
                    if stats:
                        s0 = S + 4*mt
                        if p == 0 and i == 0: a(f'v_pk_mul_f32 {vr(s0+2,2)}, {vr(x,2)}, {vr(x,2)}\nv_mov_b32 v{s0}, v{x}\nv_mov_b32 v{s0+1}, v{x+1}')
                        else: a(f'v_pk_fma_f32 {vr(s0+2,2)}, {vr(x+i,2)}, {vr(x+i,2)}, {vr(s0+2,2)}\nv_pk_add_f32 {vr(s0,2)}, {vr(s0,2)}, {vr(x+i,2)}')
                cvt_store(g, x, n, g.o, 16, f's{64+mt}', 64*p)
        if stats:
            for mt in range(2): a(f'v_add_f32 v{S+4*mt}, v{S+4*mt}, v{S+4*mt+1}\nv_add_f32 v{S+4*mt+1}, v{S+4*mt+2}, v{S+4*mt+3}')
            a.xsum([S, S+1, S+4, S+5], [T, T+1, T+2, T+3])
            a('s_mov_b64 exec, 0xffff')
            for mt in range(2): a(f'buffer_store_dwordx2 {vr(S+4*mt,2)}, v{S+12}, s[24:27], s66 offen offset:{2048*mt}')
    return f
def stat_loads(g, srd, T, voff, flags=''):
    for mt in range(4):
        for q in range(2): g.a(f'buffer_load_dwordx4 {vr(T+8*mt+4*q,4)}, v{voff}, {sr(srd,4)}, s{68+mt//2} offen offset:{2048*(mt%2)+16*q} {flags}')
def stat_reduce(g, T, n):
    a = g.a
    for mt in range(4):
        b = T + 8*mt
        a(f'v_pk_add_f32 {vr(b,2)}, {vr(b,2)}, {vr(b+2,2)}\nv_pk_add_f32 {vr(b+4,2)}, {vr(b+4,2)}, {vr(b+6,2)}\nv_pk_add_f32 {vr(b,2)}, {vr(b,2)}, {vr(b+4,2)}')
    a.xsum([T+8*mt+e for mt in range(4) for e in range(2)], [T+8*mt+2+e for mt in range(4) for e in range(2)])
    for mt in range(4):
        b = T + 8*mt; d = g.ms + 2*mt
        a(f'''v_mul_f32 v{b}, {fbits(1.0/n)}, v{b}
        v_mul_f32 v{b+1}, {fbits(1.0/n)}, v{b+1}
        v_fma_f32 v{b+1}, -v{b}, v{b}, v{b+1}
        v_max_f32 v{b+1}, 0, v{b+1}
        v_add_f32 v{b+1}, {fbits(1e-5)}, v{b+1}
        v_rsq_f32 v{d}, v{b+1}
        s_nop 0
        v_mul_f32 v{d+1}, -v{b}, v{d}''')
def k4_pre(g):
    a = g.a; a.srd(16, 'ws', WS['Z1'], 16*MB); a.srd(20, 'ws', WS['CS'], 3584*4); a.srd(24, 'ws', WS['ST2'], 2048*128)
    g.o = lane_offs(g, 224, 2); g.ms = a.alloc(8); g.so = a.alloc(); co = lane_offs(g, 0, 4, rows=False)
    a(f'v_lshlrev_b32 v{g.so}, 7, v{g.j}\nv_lshl_add_u32 v{g.so}, v{g.g}, 5, v{g.so}')
    a('s_lshl_b32 s3, s28, 14\ns_lshl_b32 s4, s62, 13\ns_add_u32 s68, s3, s4\ns_add_u32 s69, s68, 4096')
    stat_loads(g, 24, g.F[1], g.so)
    a('s_lshl_b32 s70, s29, 1\ns_add_u32 s70, s70, s63\ns_mul_i32 s3, s70, 448')
    for p, (c, n) in enumerate(segs_of(g)):
        for q in range(n // 4): a(f'buffer_load_dwordx4 a[{8*p+4*q}:{8*p+4*q+3}], v{co[0 if n==8 else 1]}, s[20:23], s3 offen offset:{c*4+16*q}')
    g.mid = lambda: stat_reduce(g, g.F[1], 1024)
def k4_epi(g):
    a = g.a; C = g.F[0]; T = C + 28; K1 = T + 8; S = g.F[1]
    k1 = -2*math.sqrt(2/math.pi)*math.log2(math.e)
    for i in range(28): a(f'v_accvgpr_read_b32 v{C+i}, a{i}')
    a(f'v_mov_b32 v{K1}, {fbits(k1)}\nv_mov_b32 v{K1+1}, {fbits(k1)}\ns_mov_b32 s72, {fbits(k1*0.044715)}\ns_mov_b32 s73, s72')
    a('s_and_b32 s3, s70, 15\ns_mul_i32 s3, s3, 458752\ns_lshr_b32 s4, s70, 4\ns_lshl_b32 s4, s4, 23\ns_add_u32 s3, s3, s4\ns_lshl_b32 s4, s28, 1\ns_add_u32 s4, s4, s62\ns_mul_i32 s4, s4, 14336\ns_add_u32 s64, s3, s4')
    for mt in range(1, 4): a(f's_add_u32 s{64+mt}, s64, {3584*mt}')
    def gelu(mt):
        segs = swap_tiles(g, mt); ms = vr(g.ms+2*mt, 2)
        for p, (c, x, n) in enumerate(segs):
            R = range(0, n, 2)
            for i in R: a(f'v_pk_mul_f32 {vr(x+i,2)}, {vr(x+i,2)}, {ms} op_sel_hi:[1,0]')
            for i in R: a(f'v_pk_fma_f32 {vr(x+i,2)}, {vr(C+8*p+i,2)}, {ms}, {vr(x+i,2)} op_sel:[0,1,0] op_sel_hi:[1,1,1]')
            for i in R: a(f'v_pk_mul_f32 {vr(T+i,2)}, {vr(x+i,2)}, {vr(x+i,2)}')
            for i in R: a(f'v_pk_fma_f32 {vr(T+i,2)}, {vr(T+i,2)}, s[72:73], {vr(K1,2)}')
            for i in R: a(f'v_pk_mul_f32 {vr(T+i,2)}, {vr(T+i,2)}, {vr(x+i,2)}')
            for i in range(n): a(f'v_exp_f32 v{T+i}, v{T+i}')
            a('s_nop 0')
            for i in R: a(f'v_pk_add_f32 {vr(T+i,2)}, {vr(T+i,2)}, 1.0 op_sel_hi:[1,0]')
            for i in range(n): a(f'v_rcp_f32 v{T+i}, v{T+i}')
            a('s_nop 0')
            for i in R: a(f'v_pk_mul_f32 {vr(x+i,2)}, {vr(x+i,2)}, {vr(T+i,2)}')
        return segs
    a(f's_cmp_ge_u32 s29, 8\ns_cbranch_scc1 L{g.name}_z2')
    for mt in range(4):
        for c, x, n in gelu(mt): cvt_store(g, x, n, g.o, 16, f's{64+mt}', 2*c)
    a(f's_endpgm\nL{g.name}_z2:')
    allsegs = []
    for mt in range(4):
        segs = gelu(mt); allsegs.append(segs); s0 = S + 4*mt; first = True
        for c, x, n in segs:
            for i in range(0, n, 2):
                if first: a(f'v_pk_mul_f32 {vr(s0+2,2)}, {vr(x,2)}, {vr(x,2)}\nv_mov_b32 v{s0}, v{x}\nv_mov_b32 v{s0+1}, v{x+1}'); first = False
                else: a(f'v_pk_fma_f32 {vr(s0+2,2)}, {vr(x+i,2)}, {vr(x+i,2)}, {vr(s0+2,2)}\nv_pk_add_f32 {vr(s0,2)}, {vr(s0,2)}, {vr(x+i,2)}')
        a(f'v_add_f32 v{s0}, v{s0}, v{s0+1}\nv_add_f32 v{s0+1}, v{s0+2}, v{s0+3}')
    a.xsum([S+4*mt+e for mt in range(4) for e in range(2)], [S+4*mt+2+e for mt in range(4) for e in range(2)])
    a.srd(24, 'ws', WS['ST3'], 2048*128); a.srd(20, 'dbg', 0, 256)
    a(f's_and_b32 s3, s70, 15\ns_lshl_b32 s3, s3, 3\nv_lshlrev_b32 v{T}, 7, v{g.j}\nv_add_u32 v{T}, s3, v{T}\ns_mov_b64 exec, 0xffff')
    for mt in range(4): a(f'buffer_store_dwordx2 {vr(S+4*mt,2)}, v{T}, s[24:27], s{68+mt//2} offen offset:{2048*(mt%2)} sc1')
    a(f'''s_mov_b64 exec, -1
    v_mov_b32 v{T+1}, 1
    s_lshl_b32 s3, s28, 2
    s_waitcnt vmcnt(0)
    s_barrier
    s_cmp_lg_u32 s30, 0
    s_cbranch_scc1 L{g.name}_w
    s_mov_b64 exec, 1
    buffer_atomic_add v{T+1}, off, s[20:23], s3 sc1
    L{g.name}_poll:
    buffer_load_dword v{T+2}, off, s[20:23], s3 sc1
    s_waitcnt vmcnt(0)
    v_readfirstlane_b32 s4, v{T+2}
    s_nop 3
    s_cmp_lt_u32 s4, 8
    s_cbranch_scc1 L{g.name}_poll
    s_mov_b64 exec, -1
    L{g.name}_w:
    s_barrier''')
    stat_loads(g, 24, C, g.so, 'sc1')
    a('s_waitcnt vmcnt(0)')
    stat_reduce(g, C, 1792)
    for mt in range(4):
        ms = vr(g.ms+2*mt, 2)
        for c, x, n in allsegs[mt]:
            for i in range(0, n, 2): a(f'v_pk_fma_f32 {vr(x+i,2)}, {vr(x+i,2)}, {ms}, {ms} op_sel:[0,0,1] op_sel_hi:[1,0,1]')
            cvt_store(g, x, n, g.o, 16, f's{64+mt}', 2*c)
def k5_pre(g):
    a = g.a; a.srd(16, 'ws', WS['U'], 2048*3584); a.srd(20, 'ws', WS['Z1'], 7*MB); a.srd(24, 'b_sp', 0, 4096)
    g.o = lane_offs(g, 3584, 2); zo = lane_offs(g, 224, 2); g.z = a.alloc(32); g.b = a.alloc(4)
    a('s_lshl_b32 s5, s28, 2\ns_add_u32 s5, s5, s30\ns_mul_i32 s3, s29, 458752\ns_mul_i32 s4, s5, 7168\ns_add_u32 s3, s3, s4')
    a(f's_mul_i32 s64, s5, {32*3584}\ns_mul_i32 s4, s29, 224\ns_add_u32 s64, s64, s4\ns_add_u32 s65, s64, {16*3584}\ns_lshl_b32 s5, s5, 6\nv_lshlrev_b32 v{g.t}, 1, v{g.j}')
    for mt in range(2):
        for p, (c, n) in enumerate(segs_of(g)):
            a(f'buffer_load_{ld(n)} {vr(g.z+16*mt+4*p,n//2)}, v{zo[0 if n==8 else 1]}, s[20:23], s3 offen offset:{3584*mt+2*c}')
        a(f'buffer_load_ushort v{g.b+2*mt}, v{g.t}, s[24:27], s5 offen offset:{32*mt}')
def k5_epi(g):
    a = g.a; T = g.F[0]
    for mt in range(2):
        a(f'v_lshlrev_b32 v{g.b+2*mt}, 16, v{g.b+2*mt}')
        for p, (c, x, n) in enumerate(swap_tiles(g, mt)):
            unpack(a, T, g.z+16*mt+4*p, n)
            for i in range(0, n, 2):
                a(f'v_pk_add_f32 {vr(x+i,2)}, {vr(x+i,2)}, {vr(g.b+2*mt,2)} op_sel_hi:[1,0]\nv_pk_mul_f32 {vr(x+i,2)}, {vr(x+i,2)}, {vr(T+i,2)}')
            cvt_store(g, x, n, g.o, 16, f's{64+mt}', 2*c)
```

```python
from core import *
from epi import unpack
import math
def k0(a, name):
    a.begin(name, 368, 256, 1024)
    D = a.alloc(64); X = a.alloc(32); t = a.alloc(8); lane = a.alloc()
    a(f'v_lshrrev_b32 v{t}, 6, v0\nv_and_b32 v{lane}, 63, v0\ns_nop 0\nv_readfirstlane_b32 s30, v{t}\ns_waitcnt lgkmcnt(0)')
    a(f's_cmp_lt_u32 s2, 112\ns_cbranch_scc1 L{name}_cs')
    a.srd(8, 'x', 0, 4*MB); a.srd(12, 'ws', WS['XN'], 4*MB)
    a(f's_sub_u32 s3, s2, 112\ns_lshl_b32 s3, s3, 14\ns_lshl_b32 s4, s30, 12\ns_add_u32 s3, s3, s4\nv_lshlrev_b32 v{lane}, 4, v{lane}')
    for i in range(4): a(f'buffer_load_dwordx4 {vr(D+4*i,4)}, v{lane}, s[8:11], s3 offen offset:{1024*i}')
    a('s_waitcnt vmcnt(0)')
    unpack(a, X, D, 32)
    def rowsum(src, sq):
        for r in range(2):
            b = src + 16*r; d = t + 2*r
            a(f'v_pk_mul_f32 {vr(d,2)}, {vr(b,2)}, {vr(b,2)}' if sq else f'v_pk_add_f32 {vr(d,2)}, {vr(b,2)}, {vr(b+2,2)}')
            for i in range(2 if sq else 4, 16, 2):
                a(f'v_pk_fma_f32 {vr(d,2)}, {vr(b+i,2)}, {vr(b+i,2)}, {vr(d,2)}' if sq else f'v_pk_add_f32 {vr(d,2)}, {vr(d,2)}, {vr(b+i,2)}')
            a(f'v_add_f32 v{d}, v{d}, v{d+1}')
        a.xsum([t, t+2], [t+1, t+3], lo16=True)
        for r in range(2): a(f'v_mul_f32 v{t+2*r}, {fbits((1 if sq else -1)/1024)}, v{t+2*r}')
    rowsum(X, False)
    for i in range(0, 32, 2): a(f'v_pk_add_f32 {vr(X+i,2)}, {vr(X+i,2)}, {vr(t+2*(i//16),2)} op_sel_hi:[1,0]')
    rowsum(X, True)
    for r in range(2): a(f'v_add_f32 v{t+2*r}, {fbits(1e-5)}, v{t+2*r}\nv_rsq_f32 v{t+2*r}, v{t+2*r}')
    a('s_nop 0')
    for i in range(0, 32, 2): a(f'v_pk_mul_f32 {vr(X+i,2)}, {vr(X+i,2)}, {vr(t+2*(i//16),2)} op_sel_hi:[1,0]\nv_cvt_pk_bf16_f32 v{D+i//2}, v{X+i}, v{X+i+1}')
    for i in range(4): a(f'buffer_store_dwordx4 {vr(D+4*i,4)}, v{lane}, s[12:15], s3 offen offset:{1024*i}')
    a(f's_endpgm\nL{name}_cs:')
    a.srd(8, 'w_in', 0, 7*MB); a.srd(12, 'ws', WS['CS'], 3584*4)
    a(f'v_lshrrev_b32 v{t}, 2, v0\nv_mul_u32_u24 v{t}, 7168, v{t}\nv_and_b32 v{t+1}, 3, v0\nv_lshl_add_u32 v{t}, v{t+1}, 4, v{t}\ns_lshl_b32 s3, s2, 6')
    for i in range(16): a(f'buffer_load_dwordx4 {vr(D+4*i,4)}, v{t}, s[8:11], s3 offen\ns_add_u32 s3, s3, {64*7168}')
    for i in range(16):
        a(f's_waitcnt vmcnt({15-i})')
        unpack(a, X + (8 if i else 0), D+4*i, 8)
        if i:
            for e in range(0, 8, 2): a(f'v_pk_add_f32 {vr(X+e,2)}, {vr(X+e,2)}, {vr(X+8+e,2)}')
    for m in ['row_ror:8', 'row_ror:4']:
        a('s_nop 1')
        for e in range(8): a(f'v_add_f32_dpp v{X+e}, v{X+e}, v{X+e} {m} row_mask:0xf bank_mask:0xf')
    a.xsum([X+e for e in range(8)], [X+8+e for e in range(8)])
    a(f'''s_lshl_b32 s4, s30, 7
    v_lshlrev_b32 v{t}, 5, v{lane}
    v_add_u32 v{t}, s4, v{t}
    v_lshlrev_b32 v{t+1}, 2, v0
    s_mov_b64 exec, 15
    ds_write_b128 v{t}, {vr(X,4)}
    ds_write_b128 v{t}, {vr(X+4,4)} offset:16
    s_mov_b64 exec, -1
    s_waitcnt lgkmcnt(0)
    s_barrier
    s_cmp_lg_u32 s30, 0
    s_cbranch_scc1 L{name}_end
    s_mov_b32 exec_hi, 0''')
    for i in range(4): a(f'ds_read_b32 v{D+i}, v{t+1} offset:{128*i}')
    a(f's_lshl_b32 s3, s2, 7\ns_waitcnt lgkmcnt(0)\nv_add_f32 v{D}, v{D}, v{D+1}\nv_add_f32 v{D+2}, v{D+2}, v{D+3}\nv_add_f32 v{D}, v{D}, v{D+2}')
    a(f'buffer_store_dword v{D}, v{t+1}, s[12:15], s3 offen')
    a.end()

def attn(a, name):
    a.begin(name, 256, 512, 65536)
    S = a.alloc(144); O = a.alloc(16); KF = a.alloc(16); Q = a.alloc(8); VF = a.alloc(16); P = a.alloc(16)
    t = a.alloc(8); lane = a.alloc(); rk = a.alloc(2); rv = a.alloc(); vo = a.alloc(); mx = a.alloc(2); sm = a.alloc(2)
    a(f'''v_lshrrev_b32 v{t}, 6, v0
    v_and_b32 v{lane}, 63, v0
    s_and_b32 s3, s2, 7
    v_readfirstlane_b32 s30, v{t}
    s_lshr_b32 s4, s2, 3
    s_and_b32 s29, s4, 7
    s_lshr_b32 s4, s4, 3
    s_lshl_b32 s28, s3, 2
    s_add_u32 s28, s28, s4
    v_lshlrev_b32 v{t}, 4, v{lane}
    v_and_b32 v{t+1}, 48, v{lane}
    v_xor_b32 v{t+1}, v{t}, v{t+1}
    v_and_b32 v{t+2}, 31, v{lane}
    v_lshrrev_b32 v{t+3}, 5, v{lane}
    v_lshlrev_b32 v{t+4}, 6, v{t+2}
    v_lshl_add_u32 v{t+4}, v{t+3}, 4, v{t+4}
    s_lshl_b32 s3, s28, 17
    s_lshl_b32 s4, s29, 14
    s_add_u32 s3, s3, s4
    s_lshl_b32 s5, s30, 11
    s_add_u32 s31, s3, s5
    s_lshl_b32 s6, s30, 12
    s_add_u32 s3, s3, s6
    s_add_u32 s32, s3, {4*MB-16384}
    s_add_u32 s33, s3, {8*MB-16384}
    s_waitcnt lgkmcnt(0)''')
    a.srd(8, 'ws', WS['QKV'], 12*MB); a.srd(12, 'ws', WS['O'], 4*MB)
    for s in range(2): a(f'buffer_load_dwordx4 {vr(Q+4*s,4)}, v{t+4}, s[8:11], s31 offen offset:{32*s}')
    a('s_mov_b32 m0, s6\ns_nop 0')
    for i in range(4): a(f'buffer_load_dwordx4 v{t+1}, s[8:11], s32 offen offset:{1024*i} lds')
    a('s_add_u32 m0, s6, 32768\ns_nop 0')
    for i in range(4): a(f'buffer_load_dwordx4 v{t}, s[8:11], s33 offen offset:{1024*i} lds')
    a(f'''v_bfe_u32 v{t+5}, v{lane}, 2, 2
    v_xor_b32 v{t+5}, v{t+5}, v{t+3}
    v_lshlrev_b32 v{t+5}, 4, v{t+5}
    v_lshl_add_u32 v{t+5}, v{t+2}, 6, v{t+5}
    v_add_u32 v{rk}, s5, v{t+5}
    v_xor_b32 v{rk+1}, 32, v{rk}
    v_bfe_u32 v{t+5}, v{lane}, 2, 2
    v_lshl_add_u32 v{t+5}, v{t+3}, 2, v{t+5}
    v_lshlrev_b32 v{t+5}, 6, v{t+5}
    v_bfe_u32 v{t+6}, v{lane}, 4, 1
    v_lshl_add_u32 v{t+5}, v{t+6}, 5, v{t+5}
    v_and_b32 v{t+6}, 3, v{lane}
    v_lshl_add_u32 v{t+5}, v{t+6}, 3, v{t+5}
    s_add_u32 s5, s5, 32768
    v_add_u32 v{rv}, s5, v{t+5}
    v_lshlrev_b32 v{vo}, 11, v{t+2}
    v_lshl_add_u32 v{vo}, v{t+3}, 4, v{vo}
    v_lshlrev_b32 v{t+3}, 2, v{t+3}
    v_sub_u32 v{t+2}, v{t+2}, v{t+3}
    s_lshl_b32 s34, s29, 19
    s_lshl_b32 s3, s30, 16
    s_add_u32 s34, s34, s3
    s_lshl_b32 s3, s28, 6
    s_add_u32 s34, s34, s3
    s_sub_u32 s35, 8, s30
    s_cmp_eq_u32 s29, 0
    s_cselect_b32 s35, s35, 0''')
    for i in range(16): a(f'v_cmp_gt_i32 {sr(64+2*i,2)}, {8*(i>>2)+(i&3)}, v{t+2}')
    a('s_waitcnt vmcnt(4)\ns_barrier')
    def kread(j): return [f'ds_read_b128 {vr(KF+8*(j&1)+4*s,4)}, v{rk+s} offset:{2048*j}' for s in range(2)]
    for r in kread(0): a(r)
    for j in range(9):
        if j < 8:
            for r in kread(j+1): a(r)
        a(f's_waitcnt lgkmcnt({2 if j < 8 else 0})')
        a(f'v_mfma_f32_32x32x16_bf16 {vr(S+16*j,16)}, {vr(KF+8*(j&1),4)}, {vr(Q,4)}, 0')
        a(f'v_mfma_f32_32x32x16_bf16 {vr(S+16*j,16)}, {vr(KF+8*(j&1)+4,4)}, {vr(Q+4,4)}, {vr(S+16*j,16)}')
    a(f's_waitcnt vmcnt(0)\ns_barrier\ns_cmp_eq_u32 s35, 0\ns_cbranch_scc1 L{name}_nm\ns_nop 7')
    for j in range(8):
        for i in range(16): a(f'v_mov_b32 v{S+16*j+i}, {fbits(-1e30)}')
        a(f's_cmp_eq_u32 s35, {j+1}\ns_cbranch_scc1 L{name}_nm')
    a(f'L{name}_nm:')
    def vread(j, b): return [f'ds_read_b64_tr_b16 {vr(VF+8*b+4*m+2*q,2)}, v{rv} offset:{2048*j+1024*m+512*q}' for m in range(2) for q in range(2)]
    for r in vread(1, 1): a(r)
    a(f'v_max_f32 v{mx}, v{S+16}, v{S+17}\nv_max_f32 v{mx+1}, v{S+18}, v{S+19}')
    for i in range(20, 128, 2): a(f'v_max3_f32 v{mx+(i//2&1)}, v{S+i}, v{S+i+1}, v{mx+(i//2&1)}')
    for i in range(16): a(f'v_cndmask_b32 v{S+128+i}, v{S+128+i}, v{S+i}, {sr(64+2*i,2)}')
    for i in range(128, 144, 2): a(f'v_max3_f32 v{mx+(i//2&1)}, v{S+i}, v{S+i+1}, v{mx+(i//2&1)}')
    c = 32 ** -0.5 * math.log2(math.e)
    a(f'''v_max_f32 v{mx}, v{mx}, v{mx+1}
    s_mov_b32 s36, {fbits(c)}
    v_mov_b32 v{mx+1}, v{mx}
    s_mov_b32 s37, s36
    s_nop 0
    v_permlane32_swap_b32 v{mx}, v{mx+1}
    s_nop 1
    v_max_f32 v{mx}, v{mx}, v{mx+1}
    v_mul_f32 v{mx}, {fbits(-c)}, v{mx}''')
    def pv(b, pr, first):
        for m in range(2): a(f'v_mfma_f32_32x32x16_bf16 {vr(O,16)}, {vr(VF+8*b+4*m,4)}, {vr(pr+4*m,4)}, {"0" if first and m == 0 else vr(O,16)}')
    for j in range(1, 9):
        b = S + 16*j; pr = P + 8*(j & 1)
        for i in range(0, 16, 2): a(f'v_pk_fma_f32 {vr(b+i,2)}, {vr(b+i,2)}, s[36:37], {vr(mx,2)} op_sel_hi:[1,1,0]')
        for i in range(16): a(f'v_exp_f32 v{b+i}, v{b+i}')
        for r in vread((j+1) % 9, (j+1) & 1): a(r)
        for i in range(0, 16, 2):
            if j == 1 and i == 0: a(f'v_pk_add_f32 {vr(sm,2)}, {vr(b,2)}, {vr(b+2,2)}')
            elif not (j == 1 and i == 2): a(f'v_pk_add_f32 {vr(sm,2)}, {vr(sm,2)}, {vr(b+i,2)}')
        if j == 8:
            for i in range(16): a(f'v_cndmask_b32 v{S+i}, 0, v{b+i}, {sr(64+2*i,2)}\nv_cndmask_b32 v{b+i}, v{b+i}, 0, {sr(64+2*i,2)}')
        for i in range(8): a(f'v_cvt_pk_bf16_f32 v{pr+i}, v{b+2*i}, v{b+2*i+1}')
        a('s_waitcnt lgkmcnt(4)\ns_nop 0')
        pv(j & 1, pr, j == 1)
    for i in range(8): a(f'v_cvt_pk_bf16_f32 v{P+8+i}, v{S+2*i}, v{S+2*i+1}')
    a('s_waitcnt lgkmcnt(0)\ns_nop 0')
    pv(1, P+8, False)
    a(f'''v_add_f32 v{sm}, v{sm}, v{sm+1}
    v_mov_b32 v{sm+1}, v{sm}
    s_nop 1
    v_permlane32_swap_b32 v{sm}, v{sm+1}
    s_nop 1
    v_add_f32 v{sm}, v{sm}, v{sm+1}
    v_rcp_f32 v{sm}, v{sm}
    s_nop 7''')
    for i in range(0, 16, 2): a(f'v_pk_mul_f32 {vr(O+i,2)}, {vr(O+i,2)}, {vr(sm,2)} op_sel_hi:[1,0]')
    for i in range(8): a(f'v_cvt_pk_bf16_f32 v{S+i}, v{O+2*i}, v{O+2*i+1}')
    a('s_nop 1')
    for p in range(2):
        for e in range(2): a(f'v_permlane32_swap_b32 v{S+4*p+e}, v{S+4*p+2+e}')
    a('s_nop 0')
    for p in range(2): a(f'buffer_store_dwordx4 {vr(S+4*p,4)}, v{vo}, s[12:15], s34 offen offset:{32*p}')
    a.end()
```

```python
import sys
from core import *
from epi import *
from misc import *
N = 'sequential_preLN__sliding_block__mixer_gmlp__prompt'
a = Asm()
k0(a, 'k0_kernel')
gemm(a, 'k1_kernel', ('ws', WS['XN'], 4*MB, 2048), ('wqkv', 0, 6*MB, 6144, 384), 1024, 192, 2, 2, 4, '8x4', k1_pre, k1_epi)
attn(a, 'k2_kernel')
gemm(a, 'k3_kernel', ('ws', WS['O'], 4*MB, 2048), ('wo', 0, 2*MB, 2048, 128), 1024, 64, 4, 1, 6, '4x8', res_pre(('x', 0, 4*MB), ('ws', WS['H'], 4*MB)), res_epi(True))
gemm(a, 'k4_kernel', ('ws', WS['H'], 4*MB, 2048), ('w_in', 0, 7*MB, 7168, 448), 1024, 224, 2, 2, 3, '8x4', k4_pre, k4_epi)
gemm(a, 'k5_kernel', ('w_sp', 0, 8*MB, 4096), ('ws', WS['Z2'], 7*MB, 224, 458752), 2048, 112, 4, 1, 5, '4x8', k5_pre, k5_epi)
gemm(a, 'k6_kernel', ('ws', WS['U'], 7*MB, 3584), ('w_out', 0, 1792*2048, 2048, 128), 1792, 64, 4, 1, 6, '4x8', res_pre(('ws', WS['H'], 4*MB), ('out', 0, 4*MB)), res_epi(False))
out = ['; generated by gen/gen.py (hand-written generator)']
for n, grid, blk, lds, nv in a.kern: out.append(f'; @launch kernel={n} grid=({grid},1,1) block=({blk},1,1) lds={lds}')
out += ['.amdgcn_target "amdgcn-amd-amdhsa--gfx950"', '.text'] + a.l + ['.section .rodata,"a"']
for n, grid, blk, lds, nv in a.kern:
    ao = (nv + 3) // 4 * 4; tot = ao + (32 if n == 'k4_kernel' else 0)
    out.append(f'''.p2align 6
.amdhsa_kernel {n}
  .amdhsa_next_free_vgpr {tot}
  .amdhsa_next_free_sgpr 102
  .amdhsa_accum_offset {ao}
  .amdhsa_group_segment_fixed_size 0
  .amdhsa_kernarg_size 88
  .amdhsa_user_sgpr_count 2
  .amdhsa_user_sgpr_kernarg_segment_ptr 1
  .amdhsa_system_sgpr_workgroup_id_x 1
.end_amdhsa_kernel''')
    print(n, 'vgpr', nv, 'lds', lds)
open(sys.argv[1] if len(sys.argv) > 1 else f'cdna_kernels/{N}.s', 'w').write('\n'.join(out) + '\n')
```
